```python
import torch

def _softmax(x, axis=-1):
    return torch.softmax(x, dim=axis)
def _gelu(x):
    return torch.nn.functional.gelu(x, approximate="tanh")
def _silu(x):
    return torch.nn.functional.silu(x)
def _sigmoid(x):
    return torch.sigmoid(x)
def _layernorm(x, axis=-1, eps=1e-5):
    m = x.mean(dim=axis, keepdim=True)
    v = x.var(dim=axis, keepdim=True, unbiased=False)
    return (x - m) / torch.sqrt(v + eps)
def _scatter_add(tgt, idx, src, axis=0):
    return tgt.clone().index_add_(axis, idx, src)
def _segment_sum(src, seg, n):
    out = torch.zeros((n,) + src.shape[1:], dtype=src.dtype)
    return out.index_add_(0, seg, src)
def _pad(x, pw):
    flat = tuple(v for pair in reversed(pw) for v in pair)
    return torch.nn.functional.pad(x, flat)

kernel_name = 'gated_mix__sliding_block__dense_activation_silu__prompt'

def setup_inputs():

    _w = (lambda a: (lambda t: t.to(torch.bfloat16) if t.is_floating_point() else t)(torch.as_tensor(a)))
    def _A_setup():
        B, S, D = 1, 2048, 640
        return {
            "x": _w((lambda *s: torch.randn(*s, dtype=torch.bfloat16) * 0.2)(B, S, D)),
            "wqkv": _w((lambda *s: torch.randn(*s, dtype=torch.bfloat16) * 0.2)(D, 3 * D)),
            "wo": _w((lambda *s: torch.randn(*s, dtype=torch.bfloat16) * 0.2)(D, D)),
        }
    _A_in = _A_setup()

    def _B_setup():
        B, S, D, F = 1, 2048, 640, 1536
        return {
            "x": _w((lambda *s: torch.randn(*s, dtype=torch.bfloat16) * 0.2)(B, S, D)),
            "w1": _w((lambda *s: torch.randn(*s, dtype=torch.bfloat16) * 3.2)(D, F) * (D ** -0.5)),
            "w2": _w((lambda *s: torch.randn(*s, dtype=torch.bfloat16) * 3.2)(F, D) * (F ** -0.5)),
        }
    _B_in = _B_setup()

    return {
        "A_x": _A_in["x"],
        "A_wqkv": _A_in["wqkv"],
        "A_wo": _A_in["wo"],
        "B_x": _B_in["x"],
        "B_w1": _B_in["w1"],
        "B_w2": _B_in["w2"],
        "gate_w": _w((lambda *s: torch.randn(*s, dtype=torch.bfloat16) * 0.2)(640) * 16.0),
    }

def reference(A_x, A_wqkv, A_wo, B_x, B_w1, B_w2, gate_w):
    def _A_ref(x, wqkv, wo):
        B, S, D = x.shape
        H = 32; Dh = D // H; W = 256
        qkv = (lambda x, *d: x.permute(*d))((x @ wqkv).reshape(B, S, 3, H, Dh), 2, 0, 3, 1, 4)
        q, k, v = qkv[0], qkv[1], qkv[2]
        scores = torch.einsum("bhqd,bhkd->bhqk", q, k) * (Dh ** -0.5)
        idx = torch.arange(S)
        mask = (idx[:, None] - idx[None, :] >= 0) & (idx[:, None] - idx[None, :] < W)
        scores = torch.where(mask[None, None], scores, -1e9)
        p = _softmax(scores, axis=-1)
        o = torch.einsum("bhqk,bhkd->bhqd", p, v)
        return (lambda x, *d: x.permute(*d))(o, 0, 2, 1, 3).reshape(B, S, D) @ wo

    def _B_ref(x, w1, w2):
        h = torch.einsum("bsd,df->bsf", x, w1)
        h = _silu(h)
        out = torch.einsum("bsf,fd->bsd", h, w2)
        return out

    x = A_x
    g = _sigmoid((x * gate_w).sum(-1, keepdims=True))
    a = _A_ref(x, A_wqkv, A_wo)
    b = _B_ref(x, B_w1, B_w2)
    return g * a + (1 - g) * b
```

```python
import re


class Cnt:
    def __init__(self, maxn):
        self.q = []
        self.maxn = maxn

    def issue(self, tag):
        self.q.append(tag)

    def need(self, tags):
        if not isinstance(tags, (list, tuple, set)):
            tags = [tags]
        last = -1
        for i, t in enumerate(self.q):
            if t in tags:
                last = i
        if last < 0:
            return None
        n = len(self.q) - 1 - last
        n = min(n, self.maxn)
        self.q = self.q[len(self.q) - n:] if n else []
        return n

    def clear(self):
        self.q = []

    def copy(self):
        c = Cnt(self.maxn)
        c.q = list(self.q)
        return c


class Asm:
    def __init__(self):
        self.lines = []
        self.vm = Cnt(63)
        self.lg = Cnt(15)
        self.uid = 0

    def __call__(self, s):
        for ln in s.split("\n"):
            ln = ln.strip()
            if ln:
                self.lines.append(ln)

    def label(self, name):
        self.lines.append(name + ":")

    def newlabel(self, base):
        self.uid += 1
        return f"{base}_{self.uid}"

    def vmem(self, s, tag):
        self(s)
        self.vm.issue(tag)

    def ds(self, s, tag):
        self(s)
        self.lg.issue(tag)

    def wait(self, vm=None, lg=None):
        parts = []
        if vm is not None:
            if vm == "all":
                n = 0
                self.vm.clear()
            else:
                n = self.vm.need(vm)
            if n is not None:
                parts.append(f"vmcnt({n})")
        if lg is not None:
            if lg == "all":
                n = 0
                self.lg.clear()
            else:
                n = self.lg.need(lg)
            if n is not None:
                parts.append(f"lgkmcnt({n})")
        if parts:
            self("s_waitcnt " + " ".join(parts))

    def state(self):
        return (self.vm.copy(), self.lg.copy())

    def restore(self, st):
        self.vm, self.lg = st[0].copy(), st[1].copy()

    def nop(self, n):
        while n > 0:
            k = min(n, 16)
            self(f"s_nop {k-1}")
            n -= k

    def text(self):
        out = []
        for ln in self.lines:
            out.append(ln if ln.endswith(":") or ln.startswith(".") else "    " + ln)
        return "\n".join(out)


def vr(a, n=1):
    return f"v{a}" if n == 1 else f"v[{a}:{a+n-1}]"


def sr(a, n=1):
    return f"s{a}" if n == 1 else f"s[{a}:{a+n-1}]"


_REG = re.compile(r"\b([vsa])(\d+)\b|\b([vsa])\[(\d+):(\d+)\]|\b(vcc|exec|m0)\b")
TRANS = ("v_exp_f32", "v_log_f32", "v_rcp_f32", "v_rsq_f32", "v_sqrt_f32", "v_sin_f32", "v_cos_f32")


def _regs(op):
    out = set()
    for m in _REG.finditer(op):
        if m.group(1):
            out.add((m.group(1), int(m.group(2))))
        elif m.group(3):
            for k in range(int(m.group(4)), int(m.group(5)) + 1):
                out.add((m.group(3), k))
        else:
            out.add((m.group(6), 0))
    return out


class Ins:
    def __init__(self, text):
        self.text = text
        t = text.split(";")[0].strip()
        p = t.split(None, 1)
        self.op = p[0]
        ops = [o.strip() for o in p[1].split(",")] if len(p) > 1 else []
        self.ops = ops
        op = self.op
        self.mfma = op.startswith("v_mfma")
        self.valu = op.startswith("v_") and not self.mfma
        self.trans = any(op.startswith(x) for x in TRANS)
        self.dot = op.startswith("v_dot")
        self.vmem = op.startswith("buffer_") or op.startswith("global_")
        self.dsop = op.startswith("ds_")
        self.salu = op.startswith("s_")
        self.states = 1
        if op == "s_nop":
            self.states = int(ops[0], 0) + 1
        self.w, self.r = set(), set()
        self.srcc = set()
        self.lds_dma = self.vmem and t.endswith(" lds")
        self.store_data = set()
        if self.mfma:
            self.w = _regs(ops[0])
            self.ab = _regs(ops[1]) | _regs(ops[2])
            self.srcc = _regs(ops[3])
            self.r = self.ab | self.srcc
            self.passes = 8 if "32x32" in op else 4
        elif self.valu:
            nd = 1
            if op.startswith("v_add_co") or op.startswith("v_addc_co") or op.startswith("v_sub_co"):
                nd = 2
            for o in ops[:nd]:
                self.w |= _regs(o)
            for o in ops[nd:]:
                self.r |= _regs(o)
            if op.startswith("v_permlane") and "swap" in op:
                self.w |= _regs(ops[1])
                self.r |= _regs(ops[0])
            if op.startswith("v_fmac") or op.startswith("v_dot2c"):
                self.r |= _regs(ops[0])
            if op.startswith("v_cmpx"):
                self.w.add(("exec", 0))
        elif self.vmem:
            if self.lds_dma:
                for o in ops:
                    self.r |= _regs(o)
                self.r.add(("m0", 0))
            elif "load" in op:
                self.w = _regs(ops[0])
                for o in ops[1:]:
                    self.r |= _regs(o)
            else:
                for o in ops:
                    self.r |= _regs(o)
                if "x4" in op or "x3" in op:
                    self.store_data = _regs(ops[0])
        elif self.dsop:
            if "read" in op or "rtn" in op or "permute" in op or "swizzle" in op:
                self.w = _regs(ops[0])
                for o in ops[1:]:
                    self.r |= _regs(o)
            else:
                for o in ops:
                    self.r |= _regs(o)
        elif self.salu:
            if op.startswith("s_cmp") or op.startswith("s_cbranch") or op in ("s_waitcnt", "s_barrier", "s_nop", "s_branch", "s_endpgm", "s_sleep", "s_setprio"):
                for o in ops:
                    self.r |= _regs(o)
            else:
                self.w = _regs(ops[0]) if ops else set()
                for o in ops[1:]:
                    self.r |= _regs(o)
                if "saveexec" in op:
                    self.w.add(("exec", 0))


def _need(p, c):
    n = 0
    vw = {x for x in p.w if x[0] in "va"}
    sw = {x for x in p.w if x[0] in ("s", "vcc")}
    if p.mfma:
        big = p.passes == 8
        if c.mfma:
            if p.w & c.ab:
                n = max(n, 12 if big else 8)
            if p.w & c.srcc and not (p.w == c.srcc and p.passes == c.passes):
                n = max(n, 10 if big else 6)
            if p.w & c.w and not (p.w & c.srcc):
                n = max(n, 10 if big else 6)
        elif (c.valu or c.vmem or c.dsop) and p.w & (c.r | c.w):
            n = max(n, 12 if big else 8)
        if c.valu and p.srcc & c.w:
            n = max(n, 7 if big else 3)
    elif p.valu:
        if c.mfma and vw & c.r:
            n = max(n, 3 if p.dot else 2)
        if p.trans and c.valu and not c.trans and vw & c.r:
            n = max(n, 1)
        if p.dot and (c.valu or c.vmem or c.dsop) and vw & (c.r | c.w):
            same = c.op == p.op and len(c.ops) > 3 and not (vw & (_regs(c.ops[1]) | _regs(c.ops[2])))
            if not same:
                n = max(n, 3)
        if c.op.startswith("v_readfirstlane") or c.op.startswith("v_readlane"):
            if vw & c.r:
                n = max(n, 1)
        if c.op.startswith("v_permlane") and vw & c.r:
            n = max(n, 2)
        if "dpp" in c.text or "row_" in c.text or "quad_perm" in c.text:
            if vw & c.r:
                n = max(n, 2)
        if sw:
            if c.vmem and sw & c.r:
                n = max(n, 5)
            if c.valu and sw & c.r:
                n = max(n, 2)
            if c.op.startswith("s_cbranch_vcc") and ("vcc", 0) in sw:
                n = max(n, 0)
        if ("exec", 0) in p.w and (c.mfma or c.op.startswith("v_permlane") or c.op.startswith("v_read")):
            n = max(n, 4)
    elif p.salu:
        if ("m0", 0) in p.w and c.lds_dma:
            n = max(n, 1)
    if p.store_data and p.store_data & c.w:
        n = max(n, 2)
    return n


def check_hazards(lines, window=24):
    ins, labels = [], {}
    for ln in lines:
        t = ln.split(";")[0].strip()
        if not t or t.startswith("."):
            continue
        if t.endswith(":"):
            labels[t[:-1]] = len(ins)
            continue
        ins.append(Ins(t))
    problems = []

    def succ(i):
        x = ins[i]
        if x.op == "s_endpgm":
            return []
        if x.op == "s_branch":
            return [labels[x.ops[0]]]
        if x.op.startswith("s_cbranch"):
            return [i + 1, labels[x.ops[0]]]
        return [i + 1] if i + 1 < len(ins) else []

    for i, p in enumerate(ins):
        if not (p.mfma or p.valu or p.store_data or ("m0", 0) in p.w):
            continue
        stack = [(j, 0) for j in succ(i)]
        seen = {}
        while stack:
            j, d = stack.pop()
            if j >= len(ins) or d >= window or seen.get(j, 99) <= d:
                continue
            seen[j] = d
            c = ins[j]
            n = _need(p, c)
            if n > d:
                problems.append(f"need {n} have {d}: [{i}] {p.text}  ->  [{j}] {c.text}")
            for k in succ(j):
                stack.append((k, d + c.states))
    return problems
```

```python
import sys, struct, math
sys.path.insert(0, "work")
from asmlib import Asm, vr, sr, check_hazards

NAME = "gated_mix__sliding_block__dense_activation_silu__prompt"

WS_QK = 0
WS_V = 5242880
WS_H = 7864320
WS_O = 14155776
WS_B = 16777216
WS_G = 19562496
WS_S = 19570688
WS_T = 19922944
WS_SIZE = 20971520
OOB = 0x40000000

L_W10, L_W11, L_SC = 98304, 122880, 147456
W1AREA = [L_W10, L_W11, 32768, 65536, 0]
L_K, L_V, L_Q = 98304, 122880, 143360
L_CNT = 163840 - 64
L_RED = 40960

SX, SWQ, SW1, SWS, SRL, SOUT, SDBG = 4, 8, 12, 16, 20, 24, 28
sW, sR1, sC, sRA, sHD, sRB, sCB, sW3 = 52, 53, 54, 55, 56, 57, 58, 59
sT = 66
sVM = 76
sNB = 78
sSTAMP = 80

SPIN_MAX = 200000


def f2u(x):
    return struct.unpack("<I", struct.pack("<f", x))[0]


class Gen:
    def __init__(self, **opt):
        self.o = dict(stamps=False, force_safe=False, ld_in="", st_out="", stop=None)
        self.o.update(opt)
        self.a = Asm()
        self.nstamp = 0

    def stamp(self, k):
        if not self.o["stamps"]:
            return
        a = self.a
        a(self.o.get("clk", "s_memrealtime") + " s[100:101]")
        a.wait(lg="all")
        a(f"s_mov_b32 s{sSTAMP+k}, s100")

    def bar(self):
        self.a("s_barrier")

    def spin(self, vdst, voff, srd, target_s, first_tag=None):
        a = self.a
        lp, dn = a.newlabel("L_spin"), a.newlabel("L_spun")
        if first_tag is not None:
            a.wait(vm=first_tag)
            a(f"v_cmp_gt_u32 vcc, {target_s}, {vr(vdst)}")
            a(f"s_cbranch_vccz {dn}")
        a(f"s_mov_b32 s{sT+9}, 0")
        a.label(lp)
        a(f"buffer_load_dword {vr(vdst)}, {vr(voff)}, {sr(srd,4)}, 0 offen sc1")
        a(f"s_add_u32 s{sT+9}, s{sT+9}, 1")
        a(f"s_cmp_gt_u32 s{sT+9}, {SPIN_MAX}")
        a("s_waitcnt vmcnt(0)")
        a(f"s_cbranch_scc1 {dn}")
        a(f"v_cmp_gt_u32 vcc, {target_s}, {vr(vdst)}")
        a(f"s_cbranch_vccnz {lp}")
        a.label(dn)
        if first_tag is None:
            a.vm.clear()

    def join(self, off, n, vt, body):
        a = self.a
        sk = a.newlabel("L_join")
        a("s_mov_b64 exec, 1")
        a(f"v_mov_b32 {vr(vt)}, {L_CNT}")
        a(f"v_mov_b32 {vr(vt+1)}, 1")
        a.ds(f"ds_add_rtn_u32 {vr(vt+2)}, {vr(vt)}, {vr(vt+1)} offset:{off}", "join")
        a.wait(lg="all")
        a(f"v_readfirstlane_b32 s{sT+8}, {vr(vt+2)}")
        a("s_mov_b64 exec, -1")
        a(f"s_cmp_lg_u32 s{sT+8}, {n-1}")
        a(f"s_cbranch_scc1 {sk}")
        body()
        a("s_mov_b64 exec, -1")
        a.label(sk)

    def xaddr(self, vdst, rowbase_s, vt):
        a = self.a
        a(f"v_and_b32 {vr(vt)}, 31, v0")
        a(f"v_lshrrev_b32 {vr(vt+1)}, 5, v0")
        a(f"v_bfe_u32 {vr(vt+2)}, v0, 1, 3")
        a(f"v_xor_b32 {vr(vt+1)}, {vr(vt+1)}, {vr(vt+2)}")
        a(f"v_lshl_add_u32 {vr(vt)}, {vr(vt)}, 7, {rowbase_s}")
        for s4 in range(4):
            a(f"v_xor_b32 {vr(vt+2)}, {2*s4}, {vr(vt+1)}")
            a(f"v_lshl_add_u32 {vr(vdst+s4)}, {vr(vt+2)}, 4, {vr(vt)}")
            a(f"v_add_u32 {vr(vdst+4+s4)}, 0x10000, {vr(vdst+s4)}")

    def trlane(self, vrow, vcol, perm, vt):
        a = self.a
        a(f"v_lshrrev_b32 {vr(vt)}, 5, v0")
        a(f"v_bfe_u32 {vr(vrow)}, v0, 2, 2")
        a(f"v_lshl_add_u32 {vr(vrow)}, {vr(vt)}, 3, {vr(vrow)}")
        a(f"v_bfe_u32 {vr(vt)}, v0, 4, 1")
        a(f"v_lshlrev_b32 {vr(vt)}, 5, {vr(vt)}")
        if perm:
            a(f"v_and_b32 {vr(vcol)}, 1, v0")
            a(f"v_lshl_add_u32 {vr(vt)}, {vr(vcol)}, 4, {vr(vt)}")
            a(f"v_bfe_u32 {vr(vcol)}, v0, 1, 1")
            a(f"v_lshl_add_u32 {vr(vcol)}, {vr(vcol)}, 3, {vr(vt)}")
        else:
            a(f"v_and_b32 {vr(vcol)}, 3, v0")
            a(f"v_lshl_add_u32 {vr(vcol)}, {vr(vcol)}, 3, {vr(vt)}")

    def prologue(self):
        a = self.a
        a("s_cmp_ge_u32 s2, 0x100")
        a("s_cbranch_scc1 L_end")
        a("s_load_dwordx16 s[32:47], s[0:1], 0")
        a("s_load_dwordx4 s[48:51], s[0:1], 64")
        if self.o["stamps"]:
            a(self.o.get("clk", "s_memrealtime") + " s[100:101]")
        a("v_lshrrev_b32 v1, 6, v0")
        a("v_and_b32 v0, 63, v0")
        a(f"v_readfirstlane_b32 s{sW}, v1")
        a(f"s_and_b32 s{sT}, s2, 7")
        a(f"s_bfe_u32 s{sT+1}, s2, 0x30003")
        a(f"s_lshr_b32 s{sT+2}, s2, 6")
        a(f"s_lshr_b32 s{sT+3}, s{sT}, 2")
        a(f"s_lshl3_add_u32 s{sR1}, s{sT+3}, s{sT+1}")
        a(f"s_and_b32 s{sT+3}, s{sT}, 3")
        a(f"s_lshl2_add_u32 s{sC}, s{sT+3}, s{sT+2}")
        a(f"s_mov_b32 s{sRA}, s{sT+1}")
        a(f"s_lshl2_add_u32 s{sHD}, s{sT}, s{sT+2}")
        a(f"s_lshr_b32 s{sT+3}, s{sT}, 1")
        a(f"s_lshl3_add_u32 s{sRB}, s{sT+3}, s{sT+1}")
        a(f"s_and_b32 s{sT+3}, s{sT}, 1")
        a(f"s_lshl2_add_u32 s{sCB}, s{sT+3}, s{sT+2}")
        a(f"s_and_b32 s{sW3}, s{sW}, 3")
        for srd, size in ((SX, 2621440), (SW1, 1966080), (SWS, WS_SIZE), (SOUT, 2621440), (SDBG, 256)):
            a(f"s_mov_b32 s{srd+2}, {size}")
        for srd in (SX, SWQ, SW1, SWS, SRL, SOUT, SDBG):
            a(f"s_mov_b32 s{srd+3}, 0x20000")
        a(f"s_cmp_lt_u32 s{sW}, 4")
        a("s_cbranch_scc1 L_qwave")

    def srds(self):
        a = self.a
        a("s_waitcnt lgkmcnt(0)")
        if self.o["stamps"]:
            a(f"s_mov_b32 s{sSTAMP}, s100")
        a(f"s_mov_b64 {sr(SX,2)}, s[32:33]")
        a(f"s_cmp_eq_u32 s{sC}, 15")
        a(f"s_cselect_b32 s{SWQ}, s44, s34")
        a(f"s_cselect_b32 s{SWQ+1}, s45, s35")
        a(f"s_mov_b32 s{SWQ+2}, 2457600")
        a(f"s_cselect_b32 s{SWQ+2}, 1280, s{SWQ+2}")
        a(f"s_mov_b64 {sr(SW1,2)}, s[40:41]")
        a(f"s_mov_b64 {sr(SWS,2)}, s[50:51]")
        a(f"s_mov_b64 {sr(SOUT,2)}, s[46:47]")
        a(f"s_mov_b64 {sr(SDBG,2)}, s[48:49]")

    def hwave(self):
        a = self.a
        ld = self.o["ld_in"]
        XH, ACC, WF = 96, 8, 56
        vOX, vOW, vXA = 8, 12, 16
        vO1, vA1 = 80, 83
        T = 88
        sOX, sOW, sSW, sLB, sO1, sL1 = 60, 61, 62, 63, 64, 65
        a(f"v_lshrrev_b32 {vr(T)}, 3, v0")
        a(f"v_mul_u32_u24 {vr(T)}, 1280, {vr(T)}")
        a(f"v_lshrrev_b32 {vr(T+1)}, 4, v0")
        a(f"v_and_b32 {vr(T+2)}, 7, v0")
        a(f"v_xor_b32 {vr(T+2)}, {vr(T+1)}, {vr(T+2)}")
        a(f"v_lshl_add_u32 {vr(vOX)}, {vr(T+2)}, 4, {vr(T)}")
        a(f"v_xor_b32 {vr(T+2)}, 4, {vr(T+2)}")
        a(f"v_lshl_add_u32 {vr(vOX+1)}, {vr(T+2)}, 4, {vr(T)}")
        a(f"v_add_u32 {vr(vOX+1)}, 9216, {vr(vOX+1)}")
        a(f"v_add_u32 {vr(vOX+2)}, {2*9216}, {vr(vOX)}")
        a(f"v_add_u32 {vr(vOX+3)}, {2*9216}, {vr(vOX+1)}")
        a(f"s_cmp_eq_u32 s{sC}, 15")
        a(f"s_cselect_b32 s{sT}, 0, 3840")
        a(f"s_cselect_b32 s{sT+1}, 0, 14336")
        a(f"s_cselect_b32 s{sT+2}, 0, -1")
        a(f"s_mov_b32 s{sSW}, 245760")
        a(f"s_cselect_b32 s{sSW}, 128, s{sSW}")
        a(f"v_lshlrev_b32 {vr(T+2)}, 2, {vr(T+1)}")
        a(f"v_and_b32 {vr(T+2)}, s{sT+2}, {vr(T+2)}")
        a(f"v_and_b32 {vr(T+3)}, 15, v0")
        a(f"v_xor_b32 {vr(T+2)}, {vr(T+2)}, {vr(T+3)}")
        a(f"v_lshlrev_b32 {vr(T+2)}, 4, {vr(T+2)}")
        a(f"v_mad_u32_u24 {vr(vOW)}, {vr(T+1)}, s{sT}, {vr(T+2)}")
        for jj in range(1, 4):
            a(f"v_add_u32 {vr(vOW+jj)}, s{sT+1}, {vr(vOW+jj-1)}")
        a(f"s_lshl2_add_u32 s{sOX}, s{sR1}, s{sW3}")
        a(f"s_mul_i32 s{sOX}, s{sOX}, {32*1280}")
        a(f"s_mul_i32 s{sOW}, s{sW3}, {16*3840}")
        a(f"s_lshl_b32 s{sT+3}, s{sC}, 8")
        a(f"s_add_u32 s{sOW}, s{sOW}, s{sT+3}")
        a(f"s_and_b32 s{sOW}, s{sOW}, s{sT+2}")
        a(f"s_lshl_b32 s{sLB}, s{sW3}, 12")
        self.srds()

        def dma_stage(s):
            slot = (s % 3) * 32768
            a(f"s_add_u32 m0, s{sLB}, {slot}")
            a("s_nop 0")
            for jj in range(4):
                a.vmem(f"buffer_load_dwordx4 {vr(vOX+jj)}, {sr(SX,4)}, s{sOX} offen offset:{jj*1024} {ld} lds", f"st{s}")
            a(f"s_add_u32 m0, s{sLB}, {slot+16384}")
            a(f"s_add_u32 s{sOX}, s{sOX}, 128")
            for jj in range(4):
                a.vmem(f"buffer_load_dwordx4 {vr(vOW+jj)}, {sr(SWQ,4)}, s{sOW} offen offset:{jj*1024} {ld} lds", f"st{s}")
            a(f"s_add_u32 s{sOW}, s{sOW}, s{sSW}")

        def dma_w1(q):
            for gg in range(2):
                a(f"s_add_u32 m0, s{sL1}, {W1AREA[q]+gg*3072}")
                a(f"s_add_u32 s{sT}, s{sO1}, {(128*q+16*gg)*3072}")
                for ii in range(3):
                    a.vmem(f"buffer_load_dwordx4 {vr(vO1+ii)}, {sr(SW1,4)}, s{sT} offen offset:{ii*1024} {ld} lds", f"w{q}")

        for s in range(3):
            dma_stage(s)
        self.xaddr(vXA, f"s{sLB}", T)
        for ii in range(3):
            a(f"v_add_u32 {vr(T)}, {64*ii}, v0")
            a(f"v_mul_u32_u24 {vr(T+1)}, 0xaaab, {vr(T)}")
            a(f"v_lshrrev_b32 {vr(T+1)}, 19, {vr(T+1)}")
            a(f"v_mul_u32_u24 {vr(T+2)}, {3072-192}, {vr(T+1)}")
            a(f"v_lshl_add_u32 {vr(vO1+ii)}, v0, 4, {vr(T+2)}")
        self.trlane(T, T + 1, True, T + 2)
        a(f"v_mul_u32_u24 {vr(T)}, 192, {vr(T)}")
        a(f"v_add_u32 {vr(vA1)}, {vr(T)}, {vr(T+1)}")
        a(f"v_add_u32 {vr(vA1+1)}, 0x10000, {vr(vA1)}")
        a(f"v_add_u32 {vr(vA1+2)}, 0x20000, {vr(vA1)}")
        a(f"s_mul_i32 s{sO1}, s{sW3}, {32*3072}")
        a(f"s_mul_i32 s{sT}, s{sC}, 192")
        a(f"s_add_u32 s{sO1}, s{sO1}, s{sT}")
        a(f"s_mul_i32 s{sL1}, s{sW3}, 6144")

        for s in range(10):
            a.wait(vm=f"st{s}", lg="xh")
            self.bar()
            if s == 0:
                self.stamp(1)
            slot = (s % 3) * 32768
            for s4 in range(4):
                base = vXA + s4 + (4 if slot >= 65536 else 0)
                a.ds(f"ds_read_b128 {vr(XH+16*s+4*s4,4)}, {vr(base)} offset:{slot & 0xffff}", "xh")
            if 1 <= s <= 7:
                dma_stage(s + 2)
            if s == 7:
                dma_w1(0)
            if s == 8:
                dma_w1(1)
                dma_w1(2)
            if s == 9:
                dma_w1(3)
        a.wait(vm="w0", lg="xh")
        self.bar()
        self.stamp(2)

        def w1_reads(n):
            q, st = divmod(n, 8)
            out = []
            for b in range(3):
                for jj in range(2):
                    off = W1AREA[q] + st * 3072 + jj * 768 + b * 64
                    out.append((f"ds_read_b64_tr_b16 {vr(WF+12*(n&1)+4*b+2*jj,2)}, {vr(vA1+(off>>16))} offset:{off & 0xffff}", f"w1_{n}_{b}"))
            return out

        for ins, tag in w1_reads(0):
            a.ds(ins, tag)
        dma_w1(4)
        for n in range(40):
            nxt = w1_reads(n + 1) if n < 39 else []
            newstage = n < 39 and (n + 1) % 8 == 0
            for b in range(3):
                if newstage and b == 0:
                    a.wait(lg="all")
                else:
                    a.wait(lg=f"w1_{n}_{b}")
                c = "0" if n == 0 else vr(ACC + 16 * b, 16)
                a(f"v_mfma_f32_32x32x16_bf16 {vr(ACC+16*b,16)}, {vr(WF+12*(n&1)+4*b,4)}, {vr(XH+4*n,4)}, {c}")
                if newstage and b == 0:
                    a.wait(vm=f"w{(n+1)//8}")
                    self.bar()
                k0, k1 = [(0, 3), (3, 6), (6, 6)][b]
                for ins, tag in nxt[k0:k1]:
                    a.ds(ins, tag)
        self.stamp(3)
        vHO = 80
        a(f"v_bfe_u32 {vr(T)}, v0, 4, 1")
        a(f"v_mul_u32_u24 {vr(T)}, 0xc000, {vr(T)}")
        a(f"v_lshrrev_b32 {vr(T+1)}, 5, v0")
        a(f"v_lshl_add_u32 {vr(T)}, {vr(T+1)}, 8, {vr(T)}")
        a(f"v_and_b32 {vr(T+1)}, 15, v0")
        a(f"v_lshl_add_u32 {vr(vHO)}, {vr(T+1)}, 4, {vr(T)}")
        a(f"s_lshl2_add_u32 s{sT}, s{sR1}, s{sW3}")
        a(f"s_mul_i32 s{sT}, s{sT}, {2*49152}")
        a(f"s_mul_i32 s{sT+1}, s{sC}, {12*256}")
        a(f"s_add_u32 s{sT}, s{sT}, s{sT+1}")
        a(f"s_add_u32 s{sT}, s{sT}, {WS_H}")
        a(f"s_mov_b32 s{sT+1}, {f2u(-math.log2(math.e)):#x}")
        E = 96
        for b in range(3):
            for hf in range(2):
                r0 = ACC + 16 * b + 8 * hf
                e0 = E + 8 * ((2 * b + hf) & 1)
                p0 = 56 + 4 * (2 * b + hf)
                for k in range(8):
                    a(f"v_mul_f32 {vr(e0+k)}, s{sT+1}, {vr(r0+k)}")
                for k in range(8):
                    a(f"v_exp_f32 {vr(e0+k)}, {vr(e0+k)}")
                for k in range(8):
                    a(f"v_add_f32 {vr(e0+k)}, 1.0, {vr(e0+k)}")
                for k in range(8):
                    a(f"v_rcp_f32 {vr(e0+k)}, {vr(e0+k)}")
                for k in range(8):
                    a(f"v_mul_f32 {vr(e0+k)}, {vr(r0+k)}, {vr(e0+k)}")
                for k in range(4):
                    a(f"v_cvt_pk_bf16_f32 {vr(p0+k)}, {vr(e0+2*k)}, {vr(e0+2*k+1)}")
                a.vmem(f"buffer_store_dwordx4 {vr(p0,4)}, {vr(vHO)}, {sr(SWS,4)}, s{sT} offen offset:{(4*b+2*hf)*256} sc1", "hst")
        self.stamp(4)
        self.hstate = a.state()
        a("s_branch L_attn")

    def qwave(self):
        a = self.a
        a.vm.clear(); a.lg.clear()
        a.label("L_qwave")
        self.srds()
        a(f"s_lshl3_add_u32 s{sT}, s2, s{sW}")
        a(f"s_cmp_lg_u32 s{sT}, 3")
        a("s_cbranch_scc1 L_noclear")
        a("v_lshlrev_b32 v1, 8, v0")
        a("v_mov_b32 v2, 0")
        a("v_mov_b32 v3, 0")
        a(f"s_mov_b32 s{sT}, {WS_S}")
        for k in range(9):
            a(f"buffer_store_dwordx2 v[2:3], v1, {sr(SWS,4)}, s{sT} offen sc1")
            a(f"s_add_u32 s{sT}, s{sT}, 16384")
        a("s_waitcnt vmcnt(0)")
        a("s_mov_b64 exec, 1")
        a("v_mov_b32 v3, 1")
        a(f"buffer_store_dword v3, v2, {sr(SDBG,4)}, 0 offen sc1")
        a("s_mov_b64 exec, -1")
        a("s_waitcnt vmcnt(0)")
        a.label("L_noclear")
        self.relayout_setup()
        a(f"s_cmp_eq_u32 s{sC}, 15")
        a("s_cbranch_scc1 L_qg")
        a(f"s_cmp_ge_u32 s{sC}, 10")
        a("s_cbranch_scc1 L_qv")
        self.qpath("qk")
        a.label("L_qv")
        self.qpath("v")
        a.label("L_qg")
        self.qpath("g")
        a.label("L_qjoin")
        self.qtail()

    vRLO, vRLA, vRDY, vZ, vL16 = 5, 6, 4, 3, 2
    sRL = 60

    def relayout_setup(self):
        a = self.a
        T, u, ks = 126, sT, sT + 1
        a(f"s_lshl_b32 s{u}, s{sW3}, 8")
        a(f"s_add_u32 s{u}, s{u}, s2")
        a(f"s_mul_hi_u32 s{ks}, s{u}, 0x1999999a")
        a(f"s_mul_i32 s{sT+2}, s{ks}, 10")
        a(f"s_sub_u32 s65, s{u}, s{sT+2}")
        a(f"s_mov_b64 {sr(SRL,2)}, s[42:43]")
        a(f"s_mov_b32 s{SRL+2}, 1966080")
        a(f"s_lshl_b32 s{sT+2}, s{ks}, 5")
        a(f"s_mov_b32 s{sT+3}, 4")
        a(f"s_mov_b32 s{sT+4}, 8")
        a(f"s_mov_b32 s{sT+5}, 16")
        a(f"s_cmp_lt_u32 s{ks}, 48")
        a("s_cbranch_scc1 L_rl0")
        a(f"s_mov_b64 {sr(SRL,2)}, s[36:37]")
        a(f"s_mov_b32 s{SRL+2}, 819200")
        a(f"s_sub_u32 s{sT+2}, s{ks}, 48")
        a(f"s_mul_i32 s{sT+2}, s{sT+2}, 40")
        a(f"s_mov_b32 s{sT+3}, 8")
        a(f"s_mov_b32 s{sT+4}, 4")
        a(f"s_mov_b32 s{sT+5}, 20")
        a(f"s_cmp_lt_u32 s{ks}, 64")
        a("s_cbranch_scc1 L_rl0")
        a(f"s_sub_u32 s{sT+2}, s{ks}, 64")
        a(f"s_mul_i32 s{sT+2}, s{sT+2}, 160")
        a(f"s_add_u32 s{sT+2}, s{sT+2}, 16")
        a(f"s_mov_b32 s{sT+3}, 20")
        a(f"s_mov_b32 s{sT+4}, 40")
        a(f"s_mov_b32 s{sT+5}, 80")
        a.label("L_rl0")
        a(f"s_mul_i32 s{sT+2}, s{sT+2}, 1280")
        a(f"s_lshl_b32 s{sT+6}, s65, 7")
        a(f"s_add_u32 s60, s{sT+2}, s{sT+6}")
        a(f"s_mul_i32 s{sT+4}, s{sT+4}, 1280")
        a(f"s_mul_i32 s{sT+5}, s{sT+5}, 1280")
        a(f"s_add_u32 s61, s60, s{sT+4}")
        a(f"s_add_u32 s62, s60, s{sT+5}")
        a(f"s_add_u32 s63, s62, s{sT+4}")
        a(f"s_mul_i32 s64, s{ks}, 5120")
        a(f"s_add_u32 s64, s64, {WS_B}")
        a(f"s_cmp_lt_u32 s{ks}, 68")
        a(f"s_cselect_b32 s64, s64, {OOB}")
        a(f"s_cselect_b32 s{SRL+2}, s{SRL+2}, 0")
        a(f"v_bfe_u32 {vr(T)}, v0, 3, 2")
        a(f"v_lshrrev_b32 {vr(T+1)}, 5, v0")
        a(f"v_mad_u32_u24 {vr(T)}, {vr(T+1)}, s{sT+3}, {vr(T)}")
        a(f"v_mul_u32_u24 {vr(T)}, 1280, {vr(T)}")
        a(f"v_and_b32 {vr(T+1)}, 7, v0")
        a(f"v_lshl_add_u32 {vr(self.vRLO)}, {vr(T+1)}, 4, {vr(T)}")
        a(f"v_lshrrev_b32 {vr(T)}, 4, v0")
        a(f"v_bfe_u32 {vr(T+1)}, v0, 2, 2")
        a(f"v_lshl_add_u32 {vr(T)}, {vr(T)}, 3, {vr(T+1)}")
        a(f"v_and_b32 {vr(T+1)}, 3, v0")
        a(f"v_lshlrev_b32 {vr(T+1)}, 3, {vr(T+1)}")
        a(f"v_lshl_add_u32 {vr(T)}, {vr(T)}, 7, {vr(T+1)}")
        a(f"s_lshl_b32 s{sT}, s{sW3}, 12")
        a(f"s_add_u32 s{sT}, s{sT}, {L_SC}")
        a(f"v_add_u32 {vr(self.vRLA)}, s{sT}, {vr(T)}")
        a(f"v_mov_b32 {vr(self.vZ)}, 0")
        a(f"v_lshlrev_b32 {vr(self.vL16)}, 4, v0")

    def relayout_load(self):
        a = self.a
        a(f"s_lshl_b32 s{sT}, s{sW3}, 12")
        for i in range(4):
            a(f"s_add_u32 m0, s{sT}, {L_SC+1024*i}")
            a("s_nop 0")
            a.vmem(f"buffer_load_dwordx4 {vr(self.vRLO)}, {sr(SRL,4)}, s{60+i} offen {self.o['ld_in']} lds", "rl")

    def relayout_store(self, vt):
        a = self.a
        a.wait(vm="rl")
        a(f"v_lshlrev_b32 {vr(vt)}, 2, v0")
        a(f"v_and_b32 {vr(vt)}, 63, {vr(vt)}")
        a(f"v_add_u32 {vr(vt)}, {L_CNT}, {vr(vt)}")
        a.ds(f"ds_write_b32 {vr(vt)}, {vr(self.vZ)}", "cz")
        for nt in range(4):
            for jj in range(2):
                a.ds(f"ds_read_b64_tr_b16 {vr(vt+4*nt+2*jj,2)}, {vr(self.vRLA)} offset:{jj*512+nt*32}", f"rl{nt}")
        for nt in range(4):
            a(f"s_lshl2_add_u32 s{sT}, s65, {nt}")
            a(f"s_mul_hi_u32 s{sT+1}, s{sT}, 0x33333334")
            a(f"s_mul_i32 s{sT+1}, s{sT+1}, {348160-5120}")
            a(f"s_lshl_b32 s{sT}, s{sT}, 10")
            a(f"s_add_u32 s{sT}, s{sT}, s{sT+1}")
            a(f"s_add_u32 s{sT}, s{sT}, s64")
            a.wait(lg=f"rl{nt}")
            a.vmem(f"buffer_store_dwordx4 {vr(vt+4*nt,4)}, {vr(self.vL16)}, {sr(SWS,4)}, s{sT} offen sc1", "bst")

    def qpath(self, kind):
        a = self.a
        a.vm.clear(); a.lg.clear()
        ACC, FR, vXA, vWA, T = 8, 72, 104, 112, 126
        if kind == "g":
            return self.gpath()
        a(f"s_and_b32 s{sT}, s{sW}, 1")
        a(f"s_lshl_b32 s{sT}, s{sT}, 13")
        self.xaddr(vXA, f"s{sT}", T)
        self.trlane(T, T + 1, kind == "qk", T + 2)
        a(f"v_lshl_add_u32 {vr(T+1)}, {vr(T)}, 8, {vr(T+1)}")
        a(f"v_and_b32 {vr(T)}, 3, {vr(T)}")
        a(f"s_and_b32 s{sT}, s{sW}, 2")
        a(f"v_xor_b32 {vr(T)}, s{sT}, {vr(T)}")
        a(f"v_lshl_add_u32 {vr(vWA)}, {vr(T)}, 6, {vr(T+1)}")
        a(f"v_xor_b32 {vr(vWA+1)}, 64, {vr(vWA)}")
        a(f"v_add_u32 {vr(vWA+2)}, 0x10000, {vr(vWA)}")
        a(f"v_add_u32 {vr(vWA+3)}, 0x10000, {vr(vWA+1)}")
        vEO, sEB, sSC = 116, sT + 6, sT + 7
        a(f"v_lshrrev_b32 {vr(T)}, 5, v0")
        a(f"v_mul_u32_u24 {vr(T)}, {32768 if kind == 'qk' else 10240}, {vr(T)}")
        a(f"v_and_b32 {vr(T+1)}, 31, v0")
        a(f"v_lshl_add_u32 {vr(vEO)}, {vr(T+1)}, 4, {vr(T)}")
        a(f"s_and_b32 s{sT}, s{sW}, 1")
        a(f"s_lshr_b32 s{sT+1}, s{sW}, 1")
        a(f"s_lshl1_add_u32 s{sT}, s{sR1}, s{sT}")
        if kind == "qk":
            a(f"s_lshl1_add_u32 s{sT+1}, s{sC}, s{sT+1}")
            a(f"s_lshl_b32 s{sT+1}, s{sT+1}, 18")
            a(f"s_lshl_b32 s{sT}, s{sT}, 10")
            a(f"s_add_u32 s{sEB}, s{sT}, s{sT+1}")
            a(f"s_cmp_lt_u32 s{sC}, 5")
            a(f"s_cselect_b32 s{sSC}, {f2u(20 ** -0.5 * math.log2(math.e)):#x}, 1.0")
        else:
            a(f"s_lshl1_add_u32 s{sT+1}, s{sC}, s{sT+1}")
            a(f"s_lshl_b32 s{sT+1}, s{sT+1}, 10")
            a(f"s_mul_i32 s{sT}, s{sT}, {4*20480}")
            a(f"s_add_u32 s{sEB}, s{sT}, s{sT+1}")
            a(f"s_add_u32 s{sEB}, s{sEB}, {WS_V - 10*2048}")

        def reads(n):
            s, s4 = divmod(n, 4)
            slot = (s % 3) * 32768
            hi = slot >= 65536
            f = FR + 16 * (n & 1)
            X = lambda mt: (f"ds_read_b128 {vr(f+4*mt,4)}, {vr(vXA+s4+(4 if hi else 0))} offset:{(slot & 0xffff)+mt*4096}", f"x{n}_{mt}")
            W = lambda t, jj: (f"ds_read_b64_tr_b16 {vr(f+8+4*t+2*jj,2)}, {vr(vWA+t+(2 if hi else 0))} offset:{(slot & 0xffff)+16384+s4*4096+jj*1024}", f"w{n}_{t}")
            return [X(0), W(0, 0), W(0, 1), X(1), W(1, 0), W(1, 1)]

        self.bar()
        for ins, tag in reads(0):
            a.ds(ins, tag)
        for n in range(40):
            newstage = (n + 1) % 4 == 0
            nxt = reads(n + 1) if n < 39 else []
            f = FR + 16 * (n & 1)
            for k, (mt, nt) in enumerate([(0, 0), (1, 0), (0, 1), (1, 1)]):
                if newstage and k == 0:
                    a.wait(lg="all")
                else:
                    a.wait(lg=[f"x{n}_{mt}", f"w{n}_{nt}"])
                acc = vr(ACC + 32 * mt + 16 * nt, 16)
                c = "0" if n == 0 else acc
                xf, wf = vr(f + 4 * mt, 4), vr(f + 8 + 4 * nt, 4)
                A, B = (wf, xf) if kind == "qk" else (xf, wf)
                a(f"v_mfma_f32_32x32x16_bf16 {acc}, {A}, {B}, {c}")
                if newstage and k == 0:
                    self.bar()
                for ins, tag in nxt[[0, 3, 6, 6][k]:[3, 6, 6, 6][k]]:
                    a.ds(ins, tag)
            if n == 35:
                a.vmem(f"buffer_load_dword {vr(self.vRDY)}, {vr(self.vZ)}, {sr(SDBG,4)}, 0 offen sc1", "rdy")
        self.stamp(2)
        self.relayout_load()
        P = 72
        first = True
        for nt in range(2):
            for mt in range(2):
                for hf in range(2):
                    r0 = ACC + 32 * mt + 16 * nt + 8 * hf
                    p0 = P + 4 * ((4 * nt + 2 * mt + hf) % 4)
                    if kind == "qk":
                        for k in range(8):
                            a(f"v_mul_f32 {vr(r0+k)}, s{sSC}, {vr(r0+k)}")
                        a(f"s_add_u32 s{sT}, s{sEB}, {(4*nt+2*hf)*32768}")
                        imm = mt * 512
                    else:
                        a(f"s_add_u32 s{sT}, s{sEB}, {(2*mt+hf)*20480}")
                        imm = nt * 512
                    for k in range(4):
                        a(f"v_cvt_pk_bf16_f32 {vr(p0+k)}, {vr(r0+2*k)}, {vr(r0+2*k+1)}")
                    a.vmem(f"buffer_store_dwordx4 {vr(p0,4)}, {vr(vEO)}, {sr(SWS,4)}, s{sT} offen offset:{imm} sc1", "qst")
        self.stamp(3)
        self.qcommon(True)

    def gpath(self):
        a = self.a
        vXA, T, FR, vGA, ZZ = 104, 126, 8, 112, 72
        a(f"s_lshl_b32 s{sT}, s{sW3}, 12")
        self.xaddr(vXA, f"s{sT}", T)
        a(f"v_lshrrev_b32 {vr(T)}, 5, v0")
        a(f"v_lshlrev_b32 {vr(vGA)}, 4, {vr(T)}")
        a(f"v_add_u32 {vr(vGA+1)}, 0x10000, {vr(vGA)}")
        for k in range(4):
            a(f"v_mov_b32 {vr(ZZ+k)}, 0")
        a(f"s_mov_b32 s{sT+6}, 0x3f803f80")
        for s in range(10):
            self.bar()
            slot = (s % 3) * 32768
            hi = slot >= 65536
            for s4 in range(4):
                a.ds(f"ds_read_b128 {vr(FR+8*s4,4)}, {vr(vXA+s4+(4 if hi else 0))} offset:{slot & 0xffff}", f"g{s4}")
                a.ds(f"ds_read_b128 {vr(FR+8*s4+4,4)}, {vr(vGA+(1 if hi else 0))} offset:{(slot & 0xffff)+16384+s4*32}", f"g{s4}")
            if s == 8:
                a.vmem(f"buffer_load_dword {vr(self.vRDY)}, {vr(self.vZ)}, {sr(SDBG,4)}, 0 offen sc1", "rdy")
            for s4 in range(4):
                a.wait(lg=f"g{s4}")
                x0, g0, t0 = FR + 8 * s4, FR + 8 * s4 + 4, 80
                for k in range(4):
                    a(f"v_and_b32 {vr(t0+k)}, 0xffff, {vr(g0+k)}")
                    a(f"v_and_b32 {vr(g0+k)}, 0xffff0000, {vr(g0+k)}")
                for k in range(4):
                    a(f"v_dot2_f32_bf16 {vr(t0+k)}, {vr(x0+k)}, {vr(t0+k)}, 0")
                    a(f"v_dot2_f32_bf16 {vr(g0+k)}, {vr(x0+k)}, {vr(g0+k)}, 0")
                a("s_nop 2")
                for k in range(4):
                    a(f"v_cvt_pk_bf16_f32 {vr(t0+k)}, {vr(t0+k)}, {vr(g0+k)}")
                for k in range(4):
                    a(f"v_dot2_f32_bf16 {vr(ZZ+k)}, {vr(t0+k)}, s{sT+6}, {vr(ZZ+k)}")
        self.bar()
        self.stamp(2)
        self.relayout_load()
        a(f"v_add_f32 {vr(ZZ)}, {vr(ZZ)}, {vr(ZZ+1)}")
        a(f"v_add_f32 {vr(ZZ+2)}, {vr(ZZ+2)}, {vr(ZZ+3)}")
        a(f"v_add_f32 {vr(ZZ)}, {vr(ZZ)}, {vr(ZZ+2)}")
        a(f"v_mov_b32 {vr(ZZ+1)}, {vr(ZZ)}")
        a("s_nop 1")
        a(f"v_permlane32_swap_b32 {vr(ZZ)}, {vr(ZZ+1)}")
        a(f"v_add_f32 {vr(ZZ)}, {vr(ZZ)}, {vr(ZZ+1)}")
        a(f"v_cvt_pk_bf16_f32 {vr(ZZ)}, {vr(ZZ)}, {vr(ZZ)}")
        a(f"v_and_b32 {vr(ZZ)}, 0xffff0000, {vr(ZZ)}")
        a(f"v_mul_f32 {vr(ZZ)}, {f2u(-math.log2(math.e)):#x}, {vr(ZZ)}")
        a(f"v_exp_f32 {vr(ZZ)}, {vr(ZZ)}")
        a(f"s_lshl2_add_u32 s{sT}, s{sR1}, s{sW3}")
        a(f"v_add_f32 {vr(ZZ)}, 1.0, {vr(ZZ)}")
        a(f"v_rcp_f32 {vr(ZZ)}, {vr(ZZ)}")
        a(f"s_lshl_b32 s{sT}, s{sT}, 7")
        a(f"v_cvt_pk_bf16_f32 {vr(ZZ)}, {vr(ZZ)}, {vr(ZZ)}")
        a(f"v_and_b32 {vr(ZZ)}, 0xffff0000, {vr(ZZ)}")
        a(f"s_add_u32 s{sT}, s{sT}, {WS_G}")
        a(f"v_lshlrev_b32 {vr(ZZ+1)}, 2, v0")
        a("s_mov_b32 exec_hi, 0")
        a.vmem(f"buffer_store_dword {vr(ZZ)}, {vr(ZZ+1)}, {sr(SWS,4)}, s{sT} offen sc1", "qst")
        a("s_mov_b64 exec, -1")
        self.stamp(3)
        self.qcommon(False)

    def qcommon(self, signal):
        a = self.a
        T = 126
        self.bar()
        self.relayout_store(88)
        self.bar()
        a(f"s_mov_b32 s{sT}, 1")
        lp = a.newlabel("L_rdy")
        a(f"v_readfirstlane_b32 s{sT+1}, {vr(self.vRDY)}")
        a(f"s_cmp_ge_u32 s{sT+1}, 1")
        a(f"s_cbranch_scc1 {lp}")
        st = a.state()
        self.spin(self.vRDY, self.vZ, SDBG, f"s{sT}")
        a.restore(st)
        a.label(lp)
        self.bar()
        self.bar()
        a.wait(vm="qst")
        self.stamp(4)
        if signal:
            def body():
                a(f"s_mul_hi_u32 s{sT}, s{sC}, 0x33333334")
                a(f"s_mul_i32 s{sT+1}, s{sT}, 5")
                a(f"s_sub_u32 s{sT+1}, s{sC}, s{sT+1}")
                a(f"s_lshl_b32 s{sT+2}, s{sT+1}, 5")
                a(f"s_mul_hi_u32 s{sT+3}, s{sT+2}, 0x33333334")
                a(f"s_add_u32 s{sT+2}, s{sT+2}, 31")
                a(f"s_mul_hi_u32 s{sT+4}, s{sT+2}, 0x33333334")
                a(f"s_lshr_b32 s{sT+5}, s{sR1}, 1")
                a(f"s_cmp_lt_u32 s{sT+5}, 7")
                a(f"s_cselect_b32 s{sT+2}, 16, 8")
                a(f"s_cmp_lt_u32 s{sC}, 5")
                a(f"s_cselect_b32 s{sT+2}, 8, s{sT+2}")
                a(f"v_and_b32 {vr(T)}, 7, v0")
                a(f"v_add_u32 {vr(T)}, s{sT+3}, {vr(T)}")
                a(f"v_lshrrev_b32 {vr(T+1)}, 3, v0")
                a(f"v_add_u32 {vr(T+1)}, s{sT+5}, {vr(T+1)}")
                a(f"v_cmp_ge_u32 vcc, s{sT+4}, {vr(T)}")
                a(f"v_cmp_gt_u32 s[{sT}:{sT+1}], s{sT+2}, v0")
                a(f"v_lshl_add_u32 {vr(T)}, {vr(T+1)}, 5, {vr(T)}")
                a(f"v_lshlrev_b32 {vr(T)}, 8, {vr(T)}")
                a(f"v_mov_b32 {vr(T+1)}, 1")
                a(f"s_and_b64 exec, vcc, s[{sT}:{sT+1}]")
                a(f"s_mov_b32 s{sT+2}, {WS_S}")
                a(f"buffer_atomic_add {vr(T+1)}, {vr(T)}, {sr(SWS,4)}, s{sT+2} offen sc1")
            self.join(0, 4, T, body)
        a("s_branch L_qjoin")

    def qtail(self):
        a = self.a
        T = 126
        a.wait(vm="all")

        def body():
            a(f"s_bfe_u32 s{sT}, s2, 0x30003")
            a(f"v_lshl_add_u32 {vr(T)}, v0, 3, s{sT}")
            a(f"v_lshlrev_b32 {vr(T)}, 8, {vr(T)}")
            a(f"v_mov_b32 {vr(T+1)}, 1")
            a(f"s_mov_b32 s{sT}, {WS_S+131072}")
            a("s_mov_b64 exec, 0xff")
            a(f"buffer_atomic_add {vr(T+1)}, {vr(T)}, {sr(SWS,4)}, s{sT} offen sc1")
        self.join(4, 4, T, body)
        self.stamp(5)
        vOV = 8
        for ii in range(5):
            a(f"v_add_u32 {vr(T)}, {64*ii}, v0")
            a(f"v_mul_u32_u24 {vr(T+1)}, 0xcccd, {vr(T)}")
            a(f"v_lshrrev_b32 {vr(T+1)}, 20, {vr(T+1)}")
            a(f"v_mul_u32_u24 {vr(T+1)}, {10240-320}, {vr(T+1)}")
            a(f"v_lshl_add_u32 {vr(vOV+ii)}, {vr(T) if ii == 4 else 'v0'}, 4, {vr(T+1)}")
        sA0, sA2, sKO, sVO, sQO = 60, 61, 62, 63, 64
        a(f"s_lshr_b32 s{sT}, s{sHD}, 1")
        a(f"s_mul_i32 s{sT}, s{sT}, 5")
        a(f"s_add_u32 s{sA2}, s{sT}, 2")
        a(f"s_and_b32 s{sT+1}, s{sHD}, 1")
        a(f"s_mul_i32 s{sT+1}, s{sT+1}, 3")
        a(f"s_add_u32 s{sA0}, s{sT}, s{sT+1}")
        a(f"s_lshl_b32 s{sA0}, s{sA0}, 15")
        a(f"s_lshl_b32 s{sA2}, s{sA2}, 15")
        a(f"s_lshl1_add_u32 s{sT}, s{sRA}, s{sW3}")
        a(f"s_lshl_b32 s{sKO}, s{sT}, 11")
        a(f"s_add_u32 s{sKO}, s{sKO}, {WS_QK + 80*32768 - 4096}")
        a(f"s_mul_i32 s{sVO}, s{sT}, {16*10240}")
        a(f"s_mul_i32 s{sT+1}, s{sHD}, 320")
        a(f"s_add_u32 s{sVO}, s{sVO}, s{sT+1}")
        a(f"s_add_u32 s{sVO}, s{sVO}, {WS_V - 32*10240}")
        a(f"s_cmp_lt_u32 s{sT}, 2")
        a(f"s_cselect_b32 s{sKO}, {OOB}, s{sKO}")
        a(f"s_cselect_b32 s{sVO}, {OOB}, s{sVO}")
        a(f"s_lshl2_add_u32 s{sQO}, s{sRA}, s{sW3}")
        a(f"s_lshl_b32 s{sQO}, s{sQO}, 10")
        a(f"s_cmp_eq_u32 s{sRA}, 0")
        a(f"s_cselect_b32 s{sT}, 6, 10")
        a(f"s_bitcmp1_b32 {(1<<6)|(1<<12)|(1<<19)|(1<<25):#x}, s{sHD}")
        a(f"s_cselect_b32 s{sT+1}, 1, 0")
        a(f"s_lshl_b32 s{sT}, s{sT}, s{sT+1}")
        a(f"s_lshl_b32 s{sT+1}, s{sRA}, 5")
        a(f"s_add_u32 s{sT+1}, s{sT+1}, s{sHD}")
        a(f"s_lshl_b32 s{sT+1}, s{sT+1}, 8")
        a(f"s_add_u32 s{sT+1}, s{sT+1}, {WS_S}")
        a(f"v_mov_b32 {vr(T)}, s{sT+1}")
        a("s_mov_b64 exec, 1")
        self.spin(T + 1, T, SWS, f"s{sT}")
        a("s_mov_b64 exec, -1")
        self.stamp(6)
        L16 = vr(self.vL16)
        a(f"s_lshl_b32 s{sT+2}, s{sW3}, 10")
        for ai in range(3):
            a(f"s_add_u32 m0, s{sT+2}, {L_Q+ai*4096}")
            a(f"s_add_u32 s{sT}, s{sQO}, s{sA2 if ai == 2 else sA0}")
            if ai == 1:
                a(f"s_add_u32 s{sT}, s{sT}, 32768")
            a.vmem(f"buffer_load_dwordx4 {L16}, {sr(SWS,4)}, s{sT} offen sc1 lds", "kv")
        a(f"s_lshl_b32 s{sT+2}, s{sW3}, 11")
        for ai in range(3):
            a(f"s_add_u32 m0, s{sT+2}, {L_K+ai*8192}")
            a(f"s_add_u32 s{sT}, s{sKO}, s{sA2 if ai == 2 else sA0}")
            if ai == 1:
                a(f"s_add_u32 s{sT}, s{sT}, 32768")
            for k in range(2):
                a.vmem(f"buffer_load_dwordx4 {L16}, {sr(SWS,4)}, s{sT} offen offset:{k*1024} sc1 lds", "kv")
        a(f"s_mul_i32 s{sT+2}, s{sW3}, 5120")
        a(f"s_add_u32 m0, s{sT+2}, {L_V}")
        a("s_nop 0")
        for ii in range(4):
            a.vmem(f"buffer_load_dwordx4 {vr(vOV+ii)}, {sr(SWS,4)}, s{sVO} offen offset:{ii*1024} sc1 lds", "kv")
        a(f"s_add_u32 m0, s{sT+2}, {L_V+4096}")
        a("s_nop 0")
        a.vmem(f"buffer_load_dwordx4 {vr(vOV+4)}, {sr(SWS,4)}, s{sVO} offen sc1 lds", "kv")
        a(f"s_and_b32 s{sT}, s2, 7")
        a(f"s_lshl_b32 s{sT}, s{sT}, 11")
        a(f"s_add_u32 s{sT}, s{sT}, {WS_S+131072}")
        a(f"v_lshl_add_u32 {vr(T)}, v0, 8, s{sT}")
        a(f"s_mov_b32 s{sT}, 32")
        a("s_mov_b64 exec, 0xff")
        self.spin(T + 1, T, SWS, f"s{sT}")
        a("s_mov_b64 exec, -1")
        self.stamp(7)

    S0, S1, MF, O, P, KA, KB, VF, Q1, Q2 = 8, 24, 40, 56, 72, 80, 88, 92, 108, 112
    vK1, vK2, vV, vOM, vOT, vQA = 114, 115, 116, 117, 118, 119
    sBO, sBL, sOO = 60, 61, 62

    def dma_b(self, c):
        a = self.a
        L16 = vr(self.vL16)
        a(f"s_add_u32 m0, s{self.sBL}, {(c % 4)*40960}")
        a(f"s_add_u32 s{sT}, s{self.sBO}, {c*40960}")
        if c == 8:
            a(f"s_cmp_lt_u32 s{sW}, 4")
            a(f"s_cselect_b32 s{sT}, s{sT}, {OOB}")
        for t in range(4):
            a.vmem(f"buffer_load_dwordx4 {L16}, {sr(SWS,4)}, s{sT} offen offset:{t*1024} sc1 lds", f"b{c}")
        a(f"s_add_u32 m0, s{self.sBL}, {(c % 4)*40960+4096}")
        a(f"s_add_u32 s{sT}, s{sT}, 4096")
        a.vmem(f"buffer_load_dwordx4 {L16}, {sr(SWS,4)}, s{sT} offen sc1 lds", f"b{c}")

    def attention(self):
        a = self.a
        S0, S1, MF, O, P, KA, KB, VF, Q1, Q2 = self.S0, self.S1, self.MF, self.O, self.P, self.KA, self.KB, self.VF, self.Q1, self.Q2
        vK1, vK2, vV, vOM, vOT, vQA = self.vK1, self.vK2, self.vV, self.vOM, self.vOT, self.vQA
        T = 126
        a.label("L_attn")
        a.restore(self.hstate)
        a(f"v_and_b32 {vr(T)}, 31, v0")
        a(f"v_lshrrev_b32 {vr(T+1)}, 5, v0")
        a(f"v_lshlrev_b32 {vr(self.vL16)}, 4, v0")
        a(f"s_lshl_b32 s{sT}, s{sW}, 9")
        a(f"v_lshl_add_u32 {vr(T+2)}, {vr(T)}, 4, s{sT}")
        a(f"v_lshl_add_u32 {vr(vK1)}, {vr(T+1)}, 13, {vr(T+2)}")
        a(f"v_add_u32 {vr(vK1)}, {L_K}, {vr(vK1)}")
        a(f"v_lshl_add_u32 {vr(vQA)}, {vr(T+1)}, 12, {vr(T+2)}")
        a(f"v_add_u32 {vr(vQA)}, {L_Q}, {vr(vQA)}")
        a(f"s_and_b32 s{sT}, s{sHD}, 1")
        a(f"s_lshl3_add_u32 s{sT}, s{sT}, {L_K+16384}")
        a(f"v_add_u32 {vr(vK2)}, s{sT}, {vr(T+2)}")
        a(f"s_mul_i32 s{sT}, s{sW}, 1280")
        a(f"s_add_u32 s{sT}, s{sT}, {L_V}")
        a(f"v_mul_u32_u24 {vr(vV)}, 320, {vr(T+1)}")
        a(f"v_lshl_add_u32 {vr(vV)}, {vr(T)}, 4, {vr(vV)}")
        a(f"v_add_u32 {vr(vV)}, s{sT}, {vr(vV)}")
        a(f"v_bfe_u32 {vr(T+2)}, v0, 4, 1")
        a(f"v_mul_u32_u24 {vr(T+2)}, 20480, {vr(T+2)}")
        a(f"v_and_b32 {vr(T+3)}, 15, v0")
        a(f"v_lshl_add_u32 {vr(vOT)}, {vr(T+3)}, 3, {vr(T+2)}")
        a(f"v_lshl_add_u32 {vr(vOM)}, {vr(T+3)}, 4, {vr(T+2)}")
        a(f"v_lshl_add_u32 {vr(vOM)}, {vr(T+1)}, 8, {vr(vOM)}")
        a(f"v_lshl_add_u32 {vr(vOT)}, {vr(T+1)}, 30, {vr(vOT)}")
        a(f"s_lshl3_add_u32 s{sT}, s{sRA}, s{sW}")
        a(f"s_add_u32 s{sNB}, s{sT}, 1")
        a(f"s_mul_i32 s{self.sOO}, s{sT}, {2*20480}")
        a(f"s_add_u32 s{self.sOO}, s{self.sOO}, {WS_O}")
        a(f"v_lshlrev_b32 {vr(T+1)}, 2, {vr(T+1)}")
        a(f"v_sub_u32 {vr(T+1)}, {vr(T)}, {vr(T+1)}")
        a(f"v_mov_b32 {vr(T+2)}, 0xff800000")
        a(f"v_mov_b32 {vr(T+3)}, 0")
        for r in range(16):
            cr = (r & 3) + 8 * (r >> 2)
            sp = sT + 2 * (r & 3)
            a(f"v_cmp_le_i32 s[{sp}:{sp+1}], {cr}, {vr(T+1)}")
            if (r & 3) == 3:
                for k in range(4):
                    sp = sT + 2 * k
                    a(f"v_cndmask_b32 {vr(S0+r-3+k)}, {vr(T+2)}, {vr(T+3)}, s[{sp}:{sp+1}]")
                    a(f"v_cndmask_b32 {vr(MF+r-3+k)}, {vr(T+3)}, {vr(T+2)}, s[{sp}:{sp+1}]")
        a(f"v_and_b32 {vr(T+1)}, 27, v0")
        a(f"v_cmp_eq_u32 vcc, 24, {vr(T+1)}")
        a(f"v_mov_b32 {vr(T+2)}, 0x3f803f80")
        a(f"s_mov_b32 s{sVM}, 0xfffff")
        a(f"s_mov_b32 s{sVM+1}, 0xfffff")
        for k in range(16):
            a(f"v_cndmask_b32 {vr(VF+k)}, {vr(T+3)}, {vr(T+2)}, vcc")
        a(f"v_mov_b32 {vr(Q2)}, 0")
        a(f"v_mov_b32 {vr(Q2+1)}, 0")
        a(f"s_mul_i32 s{self.sBL}, s{sW}, 5120")
        a(f"s_mul_i32 s{self.sBO}, s{sCB}, 348160")
        a(f"s_add_u32 s{self.sBO}, s{self.sBO}, s{self.sBL}")
        a(f"s_add_u32 s{self.sBO}, s{self.sBO}, {WS_B}")
        self.bar()
        self.stamp(8)

        def rdK(b):
            a.ds(f"ds_read_b128 {vr(KA+4*(b&1),4)}, {vr(vK1)} offset:{(8-b)*512}", f"k{b}")
            a.ds(f"ds_read_b64 {vr(KB+2*(b&1),2)}, {vr(vK2)} offset:{(8-b)*512}", f"k{b}")

        def rdV(b):
            a(f"s_mov_b64 exec, s[{sVM}:{sVM+1}]")
            for m in range(2):
                a.ds(f"ds_read_b128 {vr(VF+8*(b&1)+4*m,4)}, {vr(vV)} offset:{(8-b)*1280+m*640}", f"v{b}")
            a("s_mov_b64 exec, -1")

        def sreg(b):
            return MF if b == 8 else (S0, S1)[b & 1]

        def qk1(b):
            s = vr(sreg(b), 16)
            a(f"v_mfma_f32_32x32x16_bf16 {s}, {vr(KA+4*(b&1),4)}, {vr(Q1,4)}, {s if b in (0, 8) else '0'}")

        def qk2(b):
            s = vr(sreg(b), 16)
            a(f"v_mfma_f32_32x32x8_bf16 {s}, {vr(KB+2*(b&1),2)}, {vr(Q2,2)}, {s}")

        a.ds(f"ds_read_b128 {vr(Q1,4)}, {vr(vQA)}", "q")
        a("s_mov_b32 exec_hi, 0")
        a.ds(f"ds_read_b64 {vr(Q2,2)}, {vr(vK2)} offset:{L_Q+8192-L_K-16384}", "q")
        a("s_mov_b64 exec, -1")
        rdK(0)
        rdK(1)
        rdV(0)
        self.dma_b(0)
        self.dma_b(1)
        if self.o["force_safe"]:
            a.wait(lg="all")
            a("s_branch L_safe")
        a.wait(lg=["q", "k0"])
        qk1(0)
        qk2(0)
        for b in range(9):
            s = sreg(b)
            if b < 8:
                a.wait(lg=f"k{b+1}")
                qk1(b + 1)
            if b == 0:
                a.nop(11)
            for k in range(4):
                a(f"v_exp_f32 {vr(s+k)}, {vr(s+k)}")
            if b < 8:
                qk2(b + 1)
            if b < 7:
                rdK(b + 2)
            if b < 8:
                rdV(b + 1)
            for k in range(4, 8):
                a(f"v_exp_f32 {vr(s+k)}, {vr(s+k)}")
            for k in range(4):
                a(f"v_cvt_pk_bf16_f32 {vr(P+k)}, {vr(s+2*k)}, {vr(s+2*k+1)}")
            for k in range(8, 12):
                a(f"v_exp_f32 {vr(s+k)}, {vr(s+k)}")
            a.wait(lg=f"v{b}")
            a(f"v_mfma_f32_32x32x16_bf16 {vr(O,16)}, {vr(VF+8*(b&1),4)}, {vr(P,4)}, {'0' if b == 0 else vr(O,16)}")
            for k in range(12, 16):
                a(f"v_exp_f32 {vr(s+k)}, {vr(s+k)}")
            for k in range(4, 8):
                a(f"v_cvt_pk_bf16_f32 {vr(P+k)}, {vr(s+2*k)}, {vr(s+2*k+1)}")
            if b < 8:
                a(f"s_cmp_eq_u32 s{sNB}, {b+1}")
            else:
                a("s_nop 0")
            a("s_nop 0")
            a(f"v_mfma_f32_32x32x16_bf16 {vr(O,16)}, {vr(VF+8*(b&1)+4,4)}, {vr(P+4,4)}, {vr(O,16)}")
            if b < 8:
                a("s_cbranch_scc1 L_attn_done")
        a.label("L_attn_done")
        a.wait(lg="all")
        a(f"s_mov_b32 s{sT}, {f2u(2.0**-40):#x}")
        a(f"s_mov_b32 s{sT+1}, {f2u(2.0**40):#x}")
        a(f"s_mov_b32 s{sT+4}, {f2u(2.0**120):#x}")
        a.nop(9)
        a(f"v_add_f32 {vr(T)}, |{vr(O)}|, |{vr(O+1)}|")
        a(f"v_add_f32 {vr(T+1)}, |{vr(O+2)}|, |{vr(O+3)}|")
        a(f"v_cmp_lt_f32 vcc, s{sT}, {vr(O+12)}")
        a(f"v_cmp_gt_f32 s[{sT+2}:{sT+3}], s{sT+1}, {vr(O+12)}")
        for k in range(4, 12):
            a(f"v_add_f32 {vr(T+(k&1))}, |{vr(O+k)}|, {vr(T+(k&1))}")
        a(f"v_add_f32 {vr(T)}, {vr(T)}, {vr(T+1)}")
        a(f"s_and_b64 vcc, vcc, s[{sT+2}:{sT+3}]")
        a(f"v_cmp_gt_f32 s[{sT+2}:{sT+3}], s{sT+4}, {vr(T)}")
        a("s_nop 3")
        a(f"s_and_b64 vcc, vcc, s[{sT+2}:{sT+3}]")
        a("s_cmp_eq_u64 vcc, -1")
        a("s_cbranch_scc0 L_safe")
        a.label("L_attn_norm")
        a(f"v_rcp_f32 {vr(T)}, {vr(O+12)}")
        a(f"s_lshl_b32 s{sT}, s{sHD}, 9")
        a(f"s_add_u32 s{sT}, s{sT}, s{self.sOO}")
        for k in range(12):
            a(f"v_mul_f32 {vr(O+k)}, {vr(T)}, {vr(O+k)}")
        a(f"s_lshl_b32 s{sT+1}, s{sHD}, 7")
        a(f"s_add_u32 s{sT+1}, s{sT+1}, s{self.sOO}")
        a(f"s_add_u32 s{sT+1}, s{sT+1}, 16384")
        for k in range(6):
            a(f"v_cvt_pk_bf16_f32 {vr(P+k)}, {vr(O+2*k)}, {vr(O+2*k+1)}")
        a.vmem(f"buffer_store_dwordx4 {vr(P,4)}, {vr(vOM)}, {sr(SWS,4)}, s{sT} offen sc1", "ost")
        a.vmem(f"buffer_store_dwordx2 {vr(P+4,2)}, {vr(vOT)}, {sr(SWS,4)}, s{sT+1} offen sc1", "ost")
        self.stamp(9)

    def safe_path(self):
        a = self.a
        S, O, P, KA, KB, VF, Q1, Q2 = self.S0, self.O, self.P, self.KA, self.KB, self.VF, self.Q1, self.Q2
        M, D, A1, A2, A3, NI, T = 24, 25, 26, 27, 28, 29, 30
        sN = sT + 6
        a.label("L_safe")
        a(f"s_min_u32 s{sNB}, s{sNB}, 9")
        a(f"v_mov_b32 {vr(NI)}, 0xff800000")
        a(f"v_mov_b32 {vr(M)}, 0xff800000")
        for k in range(16):
            a(f"v_mov_b32 {vr(O+k)}, 0")
        for ps in range(2):
            lp = f"L_safe_p{ps}"
            a(f"v_and_b32 {vr(D)}, 31, v0")
            a(f"v_lshrrev_b32 {vr(T)}, 5, v0")
            a(f"v_lshlrev_b32 {vr(T)}, 2, {vr(T)}")
            a(f"v_sub_u32 {vr(D)}, {vr(D)}, {vr(T)}")
            a(f"v_add_u32 {vr(A1)}, 4096, {vr(self.vK1)}")
            a(f"v_add_u32 {vr(A2)}, 4096, {vr(self.vK2)}")
            a(f"v_add_u32 {vr(A3)}, 10240, {vr(self.vV)}")
            a(f"s_mov_b32 s{sN}, 0")
            a(f"s_movk_i32 s{sN+1}, 0x100")
            a.label(lp)
            a(f"ds_read_b128 {vr(KA,4)}, {vr(A1)}")
            a(f"ds_read_b64 {vr(KB,2)}, {vr(A2)}")
            if ps == 1:
                a(f"s_mov_b64 exec, s[{sVM}:{sVM+1}]")
                a(f"ds_read_b128 {vr(VF,4)}, {vr(A3)}")
                a(f"ds_read_b128 {vr(VF+4,4)}, {vr(A3)} offset:640")
                a("s_mov_b64 exec, -1")
            a("s_waitcnt lgkmcnt(0)")
            a(f"v_mfma_f32_32x32x16_bf16 {vr(S,16)}, {vr(KA,4)}, {vr(Q1,4)}, 0")
            a(f"v_mfma_f32_32x32x8_bf16 {vr(S,16)}, {vr(KB,2)}, {vr(Q2,2)}, {vr(S,16)}")
            a(f"v_subrev_u32 {vr(A1)}, 512, {vr(A1)}")
            a(f"v_subrev_u32 {vr(A2)}, 512, {vr(A2)}")
            a(f"v_subrev_u32 {vr(A3)}, 1280, {vr(A3)}")
            a.nop(10)
            for r in range(16):
                cr = (r & 3) + 8 * (r >> 2)
                a(f"v_subrev_u32 {vr(T)}, {cr}, {vr(D)}")
                a(f"v_cmp_gt_u32 vcc, s{sN+1}, {vr(T)}")
                a("s_nop 1")
                a(f"v_cndmask_b32 {vr(S+r)}, {vr(NI)}, {vr(S+r)}, vcc")
                if ps == 0:
                    a(f"v_max_f32 {vr(M)}, {vr(M)}, {vr(S+r)}")
                else:
                    a(f"v_sub_f32 {vr(S+r)}, {vr(S+r)}, {vr(M)}")
                    a(f"v_exp_f32 {vr(S+r)}, {vr(S+r)}")
            if ps == 1:
                a("s_nop 0")
                for k in range(8):
                    a(f"v_cvt_pk_bf16_f32 {vr(P+k)}, {vr(S+2*k)}, {vr(S+2*k+1)}")
                a("s_nop 1")
                for m in range(2):
                    a(f"v_mfma_f32_32x32x16_bf16 {vr(O,16)}, {vr(VF+4*m,4)}, {vr(P+4*m,4)}, {vr(O,16)}")
            a(f"v_add_u32 {vr(D)}, 32, {vr(D)}")
            a(f"s_add_u32 s{sN}, s{sN}, 1")
            a(f"s_cmp_lt_u32 s{sN}, s{sNB}")
            a(f"s_cbranch_scc1 {lp}")
            if ps == 0:
                a(f"v_mov_b32 {vr(T)}, {vr(M)}")
                a("s_nop 1")
                a(f"v_permlane32_swap_b32 {vr(M)}, {vr(T)}")
                a(f"v_max_f32 {vr(M)}, {vr(M)}, {vr(T)}")
        a.nop(12)
        a("s_branch L_attn_norm")

    def phase3(self):
        a = self.a
        AB, AA, BF, AO, vB, AH = 8, 28, 48, 88, 128, 160
        T, vG, vMB, vPL, vOT2 = 140, 131, 132, 133, 134
        L16 = vr(self.vL16)
        sHO, sOO2 = 63, 64
        a(f"s_cmp_lt_u32 s{sW}, 4")
        a("s_cbranch_scc1 L_noh")
        st = a.state()
        a.wait(vm="hst")
        a.restore(st)

        def body():
            a(f"s_lshl_b32 s{sT}, s{sR1}, 12")
            a(f"s_add_u32 s{sT}, s{sT}, {WS_S+65536}")
            a(f"v_lshlrev_b32 {vr(T)}, 8, v0")
            a(f"v_mov_b32 {vr(T+1)}, 1")
            a("s_mov_b64 exec, 0xffff")
            a(f"buffer_atomic_add {vr(T+1)}, {vr(T)}, {sr(SWS,4)}, s{sT} offen sc1")
        self.join(8, 4, T, body)
        a.label("L_noh")
        a(f"s_lshl3_add_u32 s{sT}, s{sRB}, s{sCB}")
        a(f"s_lshl_b32 s{sT}, s{sT}, 8")
        a(f"s_add_u32 s{sT}, s{sT}, {WS_S+65536}")
        a(f"v_mov_b32 {vr(vMB)}, s{sT}")
        a(f"s_lshr_b32 s{sT}, s{sW}, 2")
        a(f"s_mul_i32 s{sT+1}, s{sT}, 5120")
        a(f"v_add_u32 {vr(vB)}, s{sT+1}, {L16}")
        a(f"v_add_u32 {vr(vB+1)}, 61440, {vr(vB)}")
        a(f"v_add_u32 {vr(vB+2)}, {2*61440}, {vr(vB)}")
        a(f"s_lshl2_add_u32 s{sT+1}, s{sRB}, s{sW3}")
        a(f"s_lshl_b32 s{sT}, s{sT}, 10")
        a(f"s_mul_i32 s{sHO}, s{sT+1}, 49152")
        a(f"s_add_u32 s{sHO}, s{sHO}, s{sT}")
        a(f"s_add_u32 s{sHO}, s{sHO}, {WS_H}")
        a(f"s_mul_i32 s{sOO2}, s{sT+1}, 20480")
        a(f"s_add_u32 s{sOO2}, s{sOO2}, s{sT}")
        a(f"s_add_u32 s{sOO2}, s{sOO2}, {WS_O}")
        a(f"s_lshl_b32 s65, s{sT+1}, 6")
        a(f"s_add_u32 s65, s65, {WS_G}")
        a(f"v_and_b32 {vr(T)}, 15, v0")
        a(f"v_lshrrev_b32 {vr(T+1)}, 4, v0")
        a(f"v_lshlrev_b32 {vr(T+1)}, 8, {vr(T+1)}")
        a(f"v_lshl_add_u32 {vr(vOT2)}, {vr(T)}, 3, {vr(T+1)}")
        a(f"v_lshlrev_b32 {vr(T+2)}, 2, {vr(T)}")
        a.wait(vm="all")
        self.bar()
        self.stamp(10)
        a(f"s_cmp_lg_u32 s{sW}, 0")
        a("s_cbranch_scc1 L_noo")
        a(f"s_lshl_b32 s{sT}, s{sRA}, 13")
        a(f"s_add_u32 s{sT}, s{sT}, {WS_S+65536+4}")
        a(f"v_lshlrev_b32 {vr(T)}, 8, v0")
        a(f"v_mov_b32 {vr(T+1)}, 1")
        a("s_mov_b32 exec_hi, 0")
        a(f"buffer_atomic_add {vr(T+1)}, {vr(T)}, {sr(SWS,4)}, s{sT} offen sc1")
        a.label("L_noo")
        a("s_mov_b64 exec, 1")
        a(f"s_mov_b32 s{sT}, 16")
        self.spin(vPL, vMB, SWS, f"s{sT}")
        a("s_mov_b64 exec, -1")
        self.stamp(11)

        def ldh(j):
            if j % 2 == 0:
                a(f"s_add_u32 s{sT+1}, s{sHO}, {j*2048}")
            a.vmem(f"buffer_load_dwordx4 {vr(AH+4*j,4)}, {L16}, {sr(SWS,4)}, s{sT+1} offen offset:{(j%2)*2048} sc1", f"a{j}")

        for j in range(8):
            ldh(j)
        self.dma_b(2)
        for j in range(8, 12):
            ldh(j)
        self.dma_b(3)
        for j in range(12, 24):
            ldh(j)
        a.vmem(f"buffer_load_dword {vr(vG)}, {vr(T+2)}, {sr(SWS,4)}, s65 offen sc1", "g")

        def ldo():
            for j in range(8):
                if j % 2 == 0:
                    a(f"s_add_u32 s{sT+1}, s{sOO2}, {j*2048}")
                a.vmem(f"buffer_load_dwordx4 {vr(AO+4*j,4)}, {L16}, {sr(SWS,4)}, s{sT+1} offen offset:{(j%2)*2048} sc1", f"a{24+j}")
            a(f"s_add_u32 s{sT+1}, s{sOO2}, 16384")
            for j in range(2):
                for e in range(2):
                    a.vmem(f"buffer_load_dwordx2 {vr(AO+32+4*j+2*e,2)}, {vr(vOT2)}, {sr(SWS,4)}, s{sT+1} offen offset:{j*2048+e*128} sc1", f"a{32+j}")

        def reads(j):
            off = ((2 * j) % 32) * 5120
            q = off // 61440
            return [(f"ds_read_b128 {vr(BF+20*(j&1)+4*t,4)}, {vr(vB+q)} offset:{off-q*61440+t*1024}", f"r{j}_{t}") for t in range(5)]

        for ins, tag in reads(0):
            a.ds(ins, tag)
        for j in range(34):
            newchunk = j < 33 and (j + 1) % 4 == 0
            nxt = reads(j + 1) if j < 33 else []
            acc0 = AB if j < 24 else AA
            act = AH + 4 * j if j < 24 else AO + 4 * (j - 24)
            for t in range(5):
                a.wait(vm=f"a{j}" if t == 0 else None, lg="all" if (newchunk and t == 0) else f"r{j}_{t}")
                acc = vr(acc0 + 4 * t, 4)
                a(f"v_mfma_f32_16x16x32_bf16 {acc}, {vr(BF+20*(j&1)+4*t,4)}, {vr(act,4)}, {'0' if j in (0, 24) else acc}")
                if newchunk and t == 0:
                    c = (j + 1) // 4
                    a.wait(vm=f"b{c}")
                    self.bar()
                if t < len(nxt):
                    a.ds(*nxt[t])
            if newchunk:
                c = (j + 1) // 4
                if c + 3 <= 8:
                    self.dma_b(c + 3)
                if c == 3:
                    a("s_mov_b64 exec, 1")
                    a.vmem(f"buffer_load_dword {vr(vPL)}, {vr(vMB)}, {sr(SWS,4)}, 0 offen offset:4 sc1", "p3")
                    a("s_mov_b64 exec, -1")
                if c == 4:
                    a(f"v_add_u32 {vr(vMB)}, 4, {vr(vMB)}")
                    a("s_mov_b64 exec, 1")
                    a(f"s_mov_b32 s{sT}, 32")
                    self.spin(vPL, vMB, SWS, f"s{sT}", first_tag="p3")
                    a("s_mov_b64 exec, -1")
                    self.stamp(12)
                    ldo()
        self.stamp(13)
        a(f"v_and_b32 {vr(T)}, 15, v0")
        a(f"s_lshl_b32 s{sT}, s{sW}, 4")
        a(f"v_add_u32 {vr(T)}, s{sT}, {vr(T)}")
        a(f"v_mul_u32_u24 {vr(T)}, 336, {vr(T)}")
        a(f"v_and_b32 {vr(T+1)}, 0x30, v0")
        a(f"v_add_u32 {vr(T)}, {vr(T)}, {vr(T+1)}")
        a.wait(vm="g")
        a(f"v_sub_f32 {vr(T+1)}, 1.0, {vr(vG)}")
        a(f"v_cvt_pk_bf16_f32 {vr(T+1)}, {vr(T+1)}, {vr(T+1)}")
        a(f"v_and_b32 {vr(T+1)}, 0xffff0000, {vr(T+1)}")
        for k in range(20):
            a(f"v_mul_f32 {vr(AB+k)}, {vr(T+1)}, {vr(AB+k)}")
        for t in range(5):
            for k in range(4):
                a(f"v_fmac_f32 {vr(AB+4*t+k)}, {vr(vG)}, {vr(AA+4*t+k)}")
            a.ds(f"ds_write_b128 {vr(T)}, {vr(AB+4*t,4)} offset:{L_RED+t*64}", "red")
        a(f"s_mul_i32 s{sT+2}, s{sRB}, {64*1280}")
        a(f"s_mul_i32 s{sT+1}, s{sCB}, 160")
        a(f"s_add_u32 s{sT+2}, s{sT+2}, s{sT+1}")
        a(f"s_lshl_b32 s{sT}, s{sW}, 6")

        def unit_addr(extra, vlds, vout):
            a(f"v_add_u32 {vr(T+4)}, s{sT}, v0")
            if extra:
                a(f"v_add_u32 {vr(T+4)}, {extra}, {vr(T+4)}")
            a(f"v_mul_u32_u24 {vr(T+5)}, 0x199a, {vr(T+4)}")
            a(f"v_lshrrev_b32 {vr(T+5)}, 16, {vr(T+5)}")
            a(f"v_lshlrev_b32 {vr(vlds)}, 4, {vr(T+5)}")
            a(f"v_lshl_add_u32 {vr(vlds)}, {vr(T+4)}, 5, {vr(vlds)}")
            a(f"v_mul_u32_u24 {vr(vout)}, {1280-160}, {vr(T+5)}")
            a(f"v_lshl_add_u32 {vr(vout)}, {vr(T+4)}, 4, {vr(vout)}")
        unit_addr(0, T + 6, T + 7)
        unit_addr(512, T + 8, T + 9)
        a.wait(lg="all")
        self.bar()

        def unit(vlds, vout, r0):
            for k in range(4):
                a.ds(f"ds_read_b128 {vr(r0+4*k,4)}, {vr(vlds)} offset:{L_RED+(k>>1)*21504+(k&1)*16}", "fin")
            a.wait(lg="all")
            for k in range(8):
                a(f"v_add_f32 {vr(r0+k)}, {vr(r0+k)}, {vr(r0+8+k)}")
            for k in range(4):
                a(f"v_cvt_pk_bf16_f32 {vr(r0+16+k)}, {vr(r0+2*k)}, {vr(r0+2*k+1)}")
            a(f"buffer_store_dwordx4 {vr(r0+16,4)}, {vr(vout)}, {sr(SOUT,4)}, s{sT+2} offen {self.o['st_out']}")
        unit(T + 6, T + 7, 48)
        a(f"s_cmp_ge_u32 s{sW}, 2")
        a("s_cbranch_scc1 L_fin")
        unit(T + 8, T + 9, 72)
        a.label("L_fin")
        if self.o["stamps"]:
            a("s_waitcnt vmcnt(0)")
            self.stamp(14)
            a(f"s_lshl3_add_u32 s{sT}, s2, s{sW}")
            a(f"s_lshl_b32 s{sT}, s{sT}, 6")
            a(f"s_add_u32 s{sT}, s{sT}, {WS_T}")
            a("s_mov_b64 exec, 1")
            a("v_mov_b32 v1, 0")
            for k in range(16):
                a(f"v_mov_b32 v2, s{sSTAMP+k}")
                a(f"buffer_store_dword v2, v1, {sr(SWS,4)}, s{sT} offen offset:{4*k}")
        a.label("L_end")
        a("s_endpgm")

    def build(self):
        self.prologue()
        self.hwave()
        self.qwave()
        self.attention()
        self.phase3()
        self.safe_path()
        probs = check_hazards(self.a.lines)
        if probs:
            print("\n".join(probs[:40]), file=sys.stderr)
            raise SystemExit(f"{len(probs)} hazards")
        ref = open(f"cdna_kernels/{NAME}.s.ref").read().split("\n")
        head = [l for l in ref if l.startswith(";") and "@launch" not in l and "Override" not in l and "grid=ceil" not in l]
        return "\n".join(head) + f"""
; @launch grid=(256,1,1) block=(512,1,1) lds=163840
.amdgcn_target "amdgcn-amd-amdhsa--gfx950"
.text
.globl {NAME}_kernel
.p2align 8
.type {NAME}_kernel,@function
{NAME}_kernel:
{self.a.text()}
.section .rodata,"a"
.p2align 6
.amdhsa_kernel {NAME}_kernel
  .amdhsa_next_free_vgpr 256
  .amdhsa_next_free_sgpr 102
  .amdhsa_accum_offset 256
  .amdhsa_group_segment_fixed_size 0
  .amdhsa_kernarg_size 80
  .amdhsa_user_sgpr_count 2
  .amdhsa_user_sgpr_kernarg_segment_ptr 1
  .amdhsa_system_sgpr_workgroup_id_x 1
.end_amdhsa_kernel
"""


if __name__ == "__main__":
    opt = {}
    out = f"cdna_kernels/{NAME}.s"
    for x in sys.argv[1:]:
        k, v = x.split("=", 1)
        if k == "out":
            out = v
        else:
            try:
                opt[k] = eval(v)
            except Exception:
                opt[k] = v
    open(out, "w").write(Gen(**opt).build())
    print("wrote", out)
```
